```python
import torch

def _softmax(x, axis=-1):
    return torch.softmax(x, dim=axis)
def _gelu(x):
    return torch.nn.functional.gelu(x, approximate="tanh")
def _silu(x):
    return torch.nn.functional.silu(x)
def _sigmoid(x):
    return torch.sigmoid(x)
def _layernorm(x, axis=-1, eps=1e-5):
    m = x.mean(dim=axis, keepdim=True)
    v = x.var(dim=axis, keepdim=True, unbiased=False)
    return (x - m) / torch.sqrt(v + eps)
def _scatter_add(tgt, idx, src, axis=0):
    return tgt.clone().index_add_(axis, idx, src)
def _segment_sum(src, seg, n):
    out = torch.zeros((n,) + src.shape[1:], dtype=src.dtype)
    return out.index_add_(0, seg, src)
def _pad(x, pw):
    flat = tuple(v for pair in reversed(pw) for v in pair)
    return torch.nn.functional.pad(x, flat)

kernel_name = 'parallel_sum__ssm_conv_s4__dense_activation_relu__prompt'

def setup_inputs():

    _w = (lambda a: (lambda t: t.to(torch.bfloat16) if t.is_floating_point() else t)(torch.as_tensor(a)))
    def _A_setup():
        B, L, D, N = 1, 2048, 512, 128
        A_re = -(lambda _x: torch.exp(torch.as_tensor(_x)))((lambda *s: torch.randn(*s, dtype=torch.bfloat16) * 3.2)(D, N))
        A_im = torch.pi * (lambda *s: torch.randn(*s, dtype=torch.bfloat16) * 0.2)(D, N)
        B_re = (lambda *s: torch.randn(*s, dtype=torch.bfloat16) * 0.4)(D, N)
        B_im = (lambda *s: torch.randn(*s, dtype=torch.bfloat16) * 0.4)(D, N)
        C_re = (lambda *s: torch.randn(*s, dtype=torch.bfloat16) * 0.4)(D, N)
        C_im = (lambda *s: torch.randn(*s, dtype=torch.bfloat16) * 0.4)(D, N)
        log_dt = (lambda *s: torch.randn(*s, dtype=torch.bfloat16) * 0.2)(D) * 0.5 - 4.0
        Dskip = (lambda *s: torch.randn(*s, dtype=torch.bfloat16) * 0.4)(D)
        return {
            "u": _w((lambda *s: torch.randn(*s, dtype=torch.bfloat16) * 0.05)(B, L, D)),
            "A_re": _w(A_re),
            "A_im": _w(A_im),
            "B_re": _w(B_re),
            "B_im": _w(B_im),
            "C_re": _w(C_re),
            "C_im": _w(C_im),
            "log_dt": _w(log_dt),
            "Dskip": _w(Dskip),
        }
    _A_in = _A_setup()

    def _B_setup():
        B, S, D, Dff = 1, 2048, 512, 1792
        return {
            "x": _w((lambda *s: torch.randn(*s, dtype=torch.bfloat16) * 0.05)(B, S, D)),
            "w1": _w((lambda *s: torch.randn(*s, dtype=torch.bfloat16) * 0.05)(D, Dff)),
            "w2": _w((lambda *s: torch.randn(*s, dtype=torch.bfloat16) * 0.05)(Dff, D)),
        }
    _B_in = _B_setup()

    return {
        "A_u": _A_in["u"],
        "A_A_re": _A_in["A_re"],
        "A_A_im": _A_in["A_im"],
        "A_B_re": _A_in["B_re"],
        "A_B_im": _A_in["B_im"],
        "A_C_re": _A_in["C_re"],
        "A_C_im": _A_in["C_im"],
        "A_log_dt": _A_in["log_dt"],
        "A_Dskip": _A_in["Dskip"],
        "B_x": _B_in["x"],
        "B_w1": _B_in["w1"],
        "B_w2": _B_in["w2"],
    }

def reference(A_u, A_A_re, A_A_im, A_B_re, A_B_im, A_C_re, A_C_im, A_log_dt, A_Dskip, B_x, B_w1, B_w2):
    def _A_ref(u, A_re, A_im, B_re, B_im, C_re, C_im, log_dt, Dskip):
        Bsz, L, D = u.shape
        dt = torch.exp(log_dt)[:, None]
        A = A_re + 1j * A_im
        Bc = B_re + 1j * B_im
        Cc = C_re + 1j * C_im
        logdA = dt * A
        dB = dt * Bc
        l = (lambda x, dt: x.to(dt))(torch.arange(L), A_re.dtype)
        P = torch.exp(logdA[:, :, None] * l[None, None, :])
        K = torch.einsum("dn,dnl,dn->dl", Cc, P, dB).real
        L2 = 2 * L
        Kp = _pad(K, ((0, 0), (0, L)))
        up = (lambda x, *d: x.permute(*d))(u, 0, 2, 1)
        up = _pad(up, ((0, 0), (0, 0), (0, L)))
        Kf = (lambda x, axes=(-2,-1): torch.fft.rfft2(x.float(), dim=axes))(Kp[:, None, :], axes=(-2, -1))
        Uf = (lambda x, axes=(-2,-1): torch.fft.rfft2(x.float(), dim=axes))(up[:, :, None, :], axes=(-2, -1))
        Yf = Uf * Kf[None, :, :, :]
        y = (lambda x, s, axes=(-2,-1): torch.fft.irfft2(x, s=s, dim=axes).to(torch.bfloat16))(Yf, (1, L2), axes=(-2, -1))[:, :, 0, :L]
        y = (lambda x, *d: x.permute(*d))(y, 0, 2, 1) + u * Dskip[None, None, :]
        return y

    def _B_ref(x, w1, w2):
        h = torch.einsum("bsd,df->bsf", x, w1)
        zero = torch.zeros_like(h)
        h = torch.maximum(h, zero)
        return torch.einsum("bsf,fd->bsd", h, w2)

    x = A_u
    xn = _layernorm(x, axis=-1)
    return x + _A_ref(xn, A_A_re, A_A_im, A_B_re, A_B_im, A_C_re, A_C_im, A_log_dt, A_Dskip) + _B_ref(xn, B_w1, B_w2)
```

```python
import re
TRANS={'v_exp_f32','v_log_f32','v_rcp_f32','v_rsq_f32','v_sqrt_f32','v_sin_f32','v_cos_f32','v_rcp_iflag_f32'}
def regs_of(tok):
    tok=tok.strip()
    neg=tok.lstrip('-')
    m=re.fullmatch(r'abs\((.*)\)',neg) or re.fullmatch(r'\|(.*)\|',neg)
    if m: neg=m.group(1)
    m=re.fullmatch(r'([vas])(\d+)',neg)
    if m: return [(m.group(1),int(m.group(2)))]
    m=re.fullmatch(r'([vas])\[(\d+):(\d+)\]',neg)
    if m: return [(m.group(1),i) for i in range(int(m.group(2)),int(m.group(3))+1)]
    if neg=='vcc': return [('s','vcc')]
    if neg in('vcc_lo','vcc_hi'): return [('s','vcc')]
    if neg=='exec': return [('s','exec')]
    if neg=='m0': return [('s','m0')]
    return []
class Ins:
    __slots__=('text','op','ops','mods','cls','rd','wr','label','target','passes','note','srcC','dpp','lds','wide')
    def __init__(self,text,note=None):
        self.text=text; self.note=note; self.label=None; self.target=None
        t=text.split(';')[0].strip()
        if t.endswith(':'):
            self.label=t[:-1]; self.cls='label'; self.op=None; self.rd=set(); self.wr=set(); return
        if t.startswith('.'):
            self.cls='dir'; self.op=None; self.rd=set(); self.wr=set(); return
        sp=t.split(None,1); op=sp[0]; self.op=op
        rest=sp[1] if len(sp)>1 else ''
        parts=[]; depth=0; cur=''
        for ch in rest:
            if ch in '[(': depth+=1
            if ch in '])': depth-=1
            if ch==',' and depth==0: parts.append(cur.strip()); cur=''
            else: cur+=ch
        if cur.strip(): parts.append(cur.strip())
        mods=''
        if parts:
            last=parts[-1].split(None,1)
            if len(last)>1 and not last[0].endswith(':'):
                parts[-1]=last[0]; mods=last[1]
        self.ops=parts; self.mods=mods
        self.passes=0; self.srcC=set(); self.dpp=('dpp' in op) or ('quad_perm' in mods) or ('row_' in mods) or ('wave_' in mods)
        self.lds=False; self.wide=False
        R=lambda i: regs_of(parts[i]) if i<len(parts) else []
        rd=[];wr=[]
        base=re.sub(r'_(e32|e64|dpp|sdwa)$','',op)
        if op.startswith('v_mfma'):
            self.cls='mfma'; wr=R(0); rd=R(1)+R(2)+R(3); self.srcC=set(R(3))
            self.passes=8 if '32x32x16' in op else 4 if '16x16x32' in op else None
            assert self.passes
        elif op.startswith('v_'):
            self.cls='trans' if base in TRANS else 'valu'
            if base.startswith('v_cmp'):
                wr=R(0); rd=sum([R(i) for i in range(1,len(parts))],[])
                if base.startswith('v_cmpx'): wr+=[('s','exec')]
            elif (base.startswith('v_permlane') and 'swap' in base) or base=='v_swap_b32':
                wr=R(0)+R(1); rd=R(0)+R(1)
            elif base in('v_add_co_u32','v_sub_co_u32','v_addc_co_u32','v_subb_co_u32','v_mad_u64_u32'):
                wr=R(0)+R(1); rd=sum([R(i) for i in range(2,len(parts))],[])
            elif base=='v_nop': pass
            else:
                wr=R(0); rd=sum([R(i) for i in range(1,len(parts))],[])
                if base in('v_fmac_f32','v_dot2c_f32_bf16','v_writelane_b32','v_pk_fmac_f16') or self.dpp or 'dst_unused:UNUSED_PRESERVE' in mods: rd+=R(0)
        elif op.startswith('ds_'):
            self.cls='ds'
            if op.startswith('ds_read') or op.startswith('ds_bpermute') or op.startswith('ds_permute') or op.startswith('ds_swizzle') or '_rtn' in op:
                wr=R(0); rd=sum([R(i) for i in range(1,len(parts))],[])
                if 'd16' in op: rd+=R(0)
            else:
                rd=sum([R(i) for i in range(len(parts))],[])
        elif op.startswith('buffer_') or op.startswith('global_'):
            self.cls='vmem'
            islds=bool(re.search(r'\blds\b',mods)) or 'load_lds' in op
            self.lds=islds
            if op in('buffer_wbl2','buffer_inv'): pass
            elif 'load' in op and not islds:
                wr=R(0); rd=sum([R(i) for i in range(1,len(parts))],[])
                if 'd16' in op: rd+=R(0)
            elif islds:
                rd=sum([R(i) for i in range(len(parts))],[])+[('s','m0')]
            elif 'atomic' in op and re.search(r'\bsc0\b',mods):
                wr=R(0); rd=sum([R(i) for i in range(len(parts))],[])
            else:
                rd=sum([R(i) for i in range(len(parts))],[])
                self.wide=('x3' in op or 'x4' in op)
        elif op.startswith('s_load') or op.startswith('s_buffer_load') or op in('s_memtime','s_memrealtime'):
            self.cls='smem'; wr=R(0); rd=sum([R(i) for i in range(1,len(parts))],[])
        elif op.startswith('s_cbranch') or op=='s_branch':
            self.cls='branch'; self.target=parts[0]
        elif op in('s_waitcnt','s_nop','s_barrier','s_endpgm','s_sleep','s_setprio'):
            self.cls='ctl'
        elif op.startswith('s_'):
            self.cls='salu'
            if op.startswith('s_cmp') or op.startswith('s_bitcmp'): rd=R(0)+R(1)
            elif 'saveexec' in op: wr=R(0)+[('s','exec')]; rd=R(1)+[('s','exec')]
            else:
                wr=R(0); rd=sum([R(i) for i in range(1,len(parts))],[])
                if op in('s_addk_i32','s_mulk_i32'): rd+=R(0)
        else: raise ValueError('unknown op '+text)
        self.rd=set(rd); self.wr=set(wr)
    def states(self):
        if self.cls in('label','dir'): return 0
        if self.op=='s_nop': return int(self.ops[0])+1
        return 1
def isv(r): return r[0] in 'va'
def need(p,c):
    n=0
    pv=p.cls in('valu','trans'); cv=c.cls in('valu','trans')
    pw_v={r for r in p.wr if isv(r)}; pw_s={r for r in p.wr if r[0]=='s'}
    if pv:
        if c.cls=='mfma' and pw_v & c.rd: n=max(n,2)
        if p.cls=='trans' and (c.cls in('valu','mfma')) and pw_v & c.rd: n=max(n,1)
        if cv and c.dpp and pw_v & c.rd: n=max(n,2)
        if cv and c.op.startswith('v_permlane') and pw_v & c.rd: n=max(n,2)
        if cv and (c.op.startswith('v_readlane') or c.op.startswith('v_readfirstlane')) and pw_v & c.rd: n=max(n,1)
        if pw_s:
            if c.cls=='vmem' and pw_s & c.rd: n=max(n,5)
            if cv and pw_s & c.rd: n=max(n,4 if ('lane_b32' in c.op and not c.op.startswith('v_readfirst')) else 2)
            if ('s','exec') in pw_s: n=max(n,5 if cv or c.cls=='mfma' else 0)
            if c.cls in('salu','branch','smem') and (pw_s & c.rd or (c.op in('s_cbranch_vccz','s_cbranch_vccnz') and ('s','vcc') in pw_s)): n=max(n,1)
        if ('sdwa' in p.op or ('op_sel' in p.mods and not p.op.startswith('v_pk_') )) and (cv) and pw_v & (c.rd|c.wr): n=max(n,1)
    if p.cls=='mfma':
        big=p.passes==8
        if c.cls=='mfma':
            ab=c.rd-c.srcC if not (c.srcC & (set(regs_of(c.ops[1]))|set(regs_of(c.ops[2])))) else c.rd
            ab=set(regs_of(c.ops[1]))|set(regs_of(c.ops[2]))
            if pw_v & ab: n=max(n,12 if big else 8)
            if pw_v & c.srcC:
                if not (c.srcC==pw_v and c.passes==p.passes): n=max(n,10 if big else 6)
            elif pw_v & c.wr: n=max(n,12 if big else 8)
        elif c.cls in('valu','trans','ds','vmem'):
            if pw_v & (c.rd|c.wr): n=max(n,12 if big else 8)
            if cv and p.srcC & c.wr: n=max(n,7 if big else 3)
    if p.cls=='salu' and ('s','m0') in p.wr and c.cls=='vmem' and c.lds: n=max(n,1)
    if p.cls=='vmem' and p.wide and not p.lds:
        data=set(regs_of(p.ops[0] if p.op.startswith('buffer') else p.ops[1]))
        if data & {r for r in c.wr if isv(r)}: n=max(n,2 if cv else 1)
    if p.cls=='ds' and p.op in('ds_write_b128','ds_write_b96','ds_write2_b64') and False: pass
    return n
class Prog:
    def __init__(self): self.L=[]
    def __call__(self,text,note=None):
        for t in text.strip().split('\n'):
            t=t.strip()
            if t: self.L.append(Ins(t,note))
    def fix_hazards(self, verbose=False):
        MAXW=21; added=0
        changed=True
        while changed:
            changed=False
            L=self.L; lab={x.label:i for i,x in enumerate(L) if x.cls=='label'}
            preds=[[] for _ in L]
            for i,x in enumerate(L):
                if x.cls=='branch':
                    preds[lab[x.target]].append(i)
                    if x.op!='s_branch' and i+1<len(L): preds[i+1].append(i)
                elif x.op=='s_endpgm': pass
                elif i+1<len(L): preds[i+1].append(i)
            for ci,c in enumerate(L):
                if c.cls in('label','dir','ctl'): continue
                worst=0
                stack=[(p,0) for p in preds[ci]]; seen={}
                while stack:
                    pi,d=stack.pop()
                    if d>=MAXW or seen.get(pi,99)<=d: continue
                    seen[pi]=d
                    p=L[pi]
                    if p.cls not in('label','dir','ctl','branch'):
                        k=need(p,c)-d
                        if k>worst: worst=k; who=p
                    for q in preds[pi]: stack.append((q,d+p.states()))
                if worst>0:
                    if verbose: print('hazard: +%d before "%s" after "%s"'%(worst,c.text,who.text))
                    ins=[]
                    w=worst
                    while w>0:
                        k=min(w,16); ins.append(Ins('s_nop %d'%(k-1))); w-=k
                    self.L=L[:ci]+ins+L[ci:]; added+=worst; changed=True
                    break
        return added
    def text(self):
        out=[]
        for x in self.L:
            out.append(x.text if x.cls in('label','dir') else '    '+x.text)
        return '\n'.join(out)+'\n'
def trace_check(prog, wg, wave, maxsteps=2000000, poll_exit=True, verbose=False):
    L=prog.L; lab={x.label:i for i,x in enumerate(L) if x.cls=='label'}
    S={}; S[2]=wg; scc=0; pc=0; steps=0
    vm=[]; lg=[]
    errs=[]; nbar=0; counts={}
    def val(t):
        t=t.strip()
        m=re.fullmatch(r's(\d+)',t)
        if m: return S.get(int(m.group(1)))
        if t=='m0': return S.get('m0')
        try: return int(t,0)&0xffffffff
        except: return None
    def setr(t,v):
        m=re.fullmatch(r's(\d+)',t)
        if m: S[int(m.group(1))]=None if v is None else v&0xffffffff
        elif t=='m0': S['m0']=v
        else:
            for r in regs_of(t):
                S[r[1]]=None
    while True:
        steps+=1
        assert steps<maxsteps,'trace too long'
        x=L[pc]; pc+=1
        if x.cls in('label','dir'): continue
        counts[x.cls]=counts.get(x.cls,0)+1
        touched=(x.rd|x.wr)
        for q,name in((vm,'vm'),(lg,'lgkm')):
            for e in q:
                if e[0] & touched:
                    inorder_waw = (name=='vm' and x.cls=='vmem' and not (e[0]&x.rd)) or (name=='lgkm' and x.cls=='ds' and e[2]=='ds' and not (e[0]&x.rd))
                    if not inorder_waw: errs.append('%s pending "%s" touched by "%s"'%(name,e[1],x.text))
        op=x.op
        if x.cls=='vmem':
            if op not in('buffer_wbl2','buffer_inv'): vm.append((set(x.wr),x.text,'vm'))
            else: vm.append((set(),x.text,'vm'))
            if len(vm)>63: errs.append('vmcnt overflow at '+x.text)
        elif x.cls=='ds': lg.append((set(x.wr),x.text,'ds'))
        elif x.cls=='smem':
            lg.append((set(x.wr),x.text,'smem'))
            for r in x.wr: S[r[1]]=None
        elif op=='s_waitcnt':
            t=x.text
            m=re.search(r'vmcnt\((\d+)\)',t)
            if m:
                n=int(m.group(1)); vm=vm[len(vm)-n:] if n<len(vm) and n>0 else ([] if n==0 else vm)
            m=re.search(r'lgkmcnt\((\d+)\)',t)
            if m:
                n=int(m.group(1))
                if n>0 and any(e[2]=='smem' for e in lg): errs.append('counted lgkmcnt with smem outstanding: '+t)
                lg=lg[len(lg)-n:] if n<len(lg) and n>0 else ([] if n==0 else lg)
        elif op=='s_barrier': nbar+=1
        elif op=='s_endpgm': break
        elif x.cls=='branch':
            if op=='s_branch': take=True
            elif x.note=='poll': take=False
            elif x.note=='taken': take=True
            elif x.note=='nottaken': take=False
            elif op=='s_cbranch_scc1': assert scc is not None,x.text; take=scc==1
            elif op=='s_cbranch_scc0': assert scc is not None,x.text; take=scc==0
            elif op=='s_cbranch_execz': take=False
            else: raise ValueError('branch needs note: '+x.text)
            if take: pc=lab[x.target]
        elif x.cls=='salu':
            o=x.ops
            a=val(o[1]) if len(o)>1 else None; b=val(o[2]) if len(o)>2 else None
            if op.startswith('s_cmp'):
                a=val(o[0]); b=val(o[1])
                if a is None or b is None: scc=None
                else:
                    f=op.split('_')[2]
                    if op.endswith('i32'):
                        a=a-(1<<32) if a>>31 else a; b=b-(1<<32) if b>>31 else b
                    scc=int({'eq':a==b,'lg':a!=b,'lt':a<b,'le':a<=b,'gt':a>b,'ge':a>=b}[f])
            elif op=='s_bitcmp1_b32': a=val(o[0]); b=val(o[1]); scc=None if a is None else (a>>b)&1
            elif op=='s_bitcmp0_b32': a=val(o[0]); b=val(o[1]); scc=None if a is None else 1-((a>>b)&1)
            elif op in('s_mov_b32','s_movk_i32'): setr(o[0],a)
            elif op=='s_cselect_b32': setr(o[0], None if scc is None else (a if scc else b))
            elif op=='s_addk_i32':
                c=val(o[0]); setr(o[0], None if c is None else c+int(o[1],0)); scc=None
            elif op in('s_add_u32','s_add_i32','s_sub_u32','s_sub_i32','s_mul_i32','s_lshl_b32','s_lshr_b32','s_and_b32','s_or_b32','s_xor_b32','s_min_u32','s_max_u32','s_mul_hi_u32','s_bfe_u32','s_lshl1_add_u32','s_lshl2_add_u32','s_lshl3_add_u32','s_lshl4_add_u32'):
                if a is None or b is None: r=None
                else:
                    r={'s_add_u32':lambda:a+b,'s_add_i32':lambda:a+b,'s_sub_u32':lambda:a-b,'s_sub_i32':lambda:a-b,'s_mul_i32':lambda:a*b,'s_lshl_b32':lambda:a<<(b&31),'s_lshr_b32':lambda:a>>(b&31),'s_and_b32':lambda:a&b,'s_or_b32':lambda:a|b,'s_xor_b32':lambda:a^b,'s_min_u32':lambda:min(a,b),'s_max_u32':lambda:max(a,b),'s_mul_hi_u32':lambda:(a*b)>>32,'s_bfe_u32':lambda:(a>>(b&31))&((1<<((b>>16)&127))-1),'s_lshl1_add_u32':lambda:(a<<1)+b,'s_lshl2_add_u32':lambda:(a<<2)+b,'s_lshl3_add_u32':lambda:(a<<3)+b,'s_lshl4_add_u32':lambda:(a<<4)+b}[op]()
                setr(o[0],r)
                if op!='s_mul_i32': scc=None if r is None else int((r&0xffffffff)!=0) if op in('s_lshl_b32','s_lshr_b32','s_and_b32','s_or_b32','s_xor_b32','s_bfe_u32') else None
            else:
                for r in x.wr:
                    if isinstance(r[1],int): S[r[1]]=None
                scc=None if op not in('s_mov_b64','s_getpc_b64') else scc
        elif x.cls in('valu','trans'):
            if op.startswith('v_readfirstlane') or op.startswith('v_readlane'):
                setr(x.ops[0], wave if x.note=='wave' else (wave*64 if x.note=='tid0' else None))
    return dict(errs=errs,barriers=nbar,counts=counts)
```

```python
import sys
from asmlib import *
from common import *

XNT=0; YT=2<<20; HB=4<<20; STATS=12<<20; FA=STATS+0x10000; FB=FA+0x1000; FC=FB+0x1000; PROF=13<<20; DUMP=14<<20
WS_SIZE=16<<20
NS=4; SLOT=16384
RING=0
KC=NS*SLOT
KCOPY=4288; KCH=4*KCOPY
UI=KC+2*KCH
UCH=7520; SCR=UI; SCRW=4608
BOUNCE=UI+4*SCRW
TAB=BOUNCE+32768
TABCH=4112
RED=TAB+2*TABCH
CS=RED+256
LDS_BYTES=163840
assert CS+512<=LDS_BYTES

class Role:
    def __init__(s,p,name,prof): s.p=p; s.vm=[]; s.lg=[]; s.name=name; s.nbar=0; s.prof=prof; s.nst=0
    def __call__(s,t,note=None): s.p(t,note)
    def vmem(s,t,tag=None): s.p(t); s.vm.append(tag)
    def ds(s,t,tag=None): s.p(t); s.lg.append(tag)
    def _n(s,q,tag):
        idx=[i for i,x in enumerate(q) if x==tag]
        return None if not idx else len(q)-1-idx[-1]
    def wait(s,vm=None,lg=None):
        parts=[]
        if vm is not None:
            n=0 if vm=='all' else s._n(s.vm,vm)
            if n is not None and (n<len(s.vm)):
                assert n<=63
                parts.append('vmcnt(%d)'%n); s.vm=s.vm[len(s.vm)-n:] if n else []
        if lg is not None:
            n=0 if lg=='all' else s._n(s.lg,lg)
            if n is not None and (n<len(s.lg)):
                n=min(n,15); parts.append('lgkmcnt(%d)'%n); s.lg=s.lg[len(s.lg)-n:] if n else []
        if parts: s.p('s_waitcnt '+' '.join(parts))
    def bar(s): s.p('s_barrier'); s.nbar+=1
    def stamp(s):
        if not s.prof: return
        s.p('s_memrealtime s[98:99]\ns_waitcnt lgkmcnt(0)'); s.lg=[]
        s.p('v_writelane_b32 v127, s98, %d'%s.nst); s.nst+=1

def interleave(R, mf, fill, per=2, first=0):
    fill=list(fill)
    for i,m in enumerate(mf):
        m()
        if i>=first:
            for _ in range(per):
                if fill: fill.pop(0)()
    for f in fill: f()

def gen(path, prof=False, dump=None, tickfill=36):
    p=Prog()
    p('s_cmp_ge_u32 s2, 256\ns_cbranch_scc1 L_end')
    p('s_load_dwordx16 s[44:59], s[0:1], 0')
    p('s_load_dwordx2 s[60:61], s[0:1], 64')
    p('s_load_dwordx4 s[64:67], s[0:1], 80')
    p('s_load_dwordx4 s[68:71], s[0:1], 96')
    p('s_load_dwordx2 s[72:73], s[0:1], 112')
    p('v_lshrrev_b32 v1, 6, v0')
    p('v_and_b32 v0, 63, v0')
    p('v_readfirstlane_b32 s32, v1',note='wave')
    p('s_and_b32 s34, s2, 7\ns_lshr_b32 s35, s2, 3')
    p('s_lshr_b32 s36, s34, 1\ns_lshl_b32 s36, s36, 2\ns_and_b32 s3, s35, 3\ns_add_u32 s36, s36, s3')
    p('s_and_b32 s37, s34, 1\ns_lshl_b32 s37, s37, 3\ns_lshr_b32 s40, s35, 2\ns_add_u32 s37, s37, s40')
    p('s_lshl_b32 s38, s34, 5\ns_add_u32 s38, s38, s35')
    p('s_lshl_b32 s39, s34, 2\ns_add_u32 s39, s39, s3')
    p('s_and_b32 s42, s37, 1\ns_and_b32 s33, s32, 3')
    p('s_lshl_b32 s43, s40, 1\ns_lshl_b32 s4, s3, 2\ns_add_u32 s43, s43, s4')
    p('v_lshrrev_b32 v1, 2, v0\nv_and_b32 v2, 3, v0\nv_lshrrev_b32 v5, 5, v0\nv_lshlrev_b32 v5, 1, v5\nv_xor_b32 v2, v2, v5\nv_lshlrev_b32 v2, 4, v2')
    p('v_and_b32 v3, 15, v0\nv_lshrrev_b32 v4, 4, v0')
    p('s_waitcnt lgkmcnt(0)')
    p('s_mov_b32 s8, s44\ns_and_b32 s9, s45, 0xffff\ns_mov_b32 s10, 0x200000\ns_mov_b32 s11, 0x20000')
    p('s_sub_u32 s12, s64, 2048\ns_subb_u32 s13, s65, 0\ns_and_b32 s13, s13, 0xffff\ns_mov_b32 s14, %d\ns_mov_b32 s15, 0x20000'%(512*1792*2+2048))
    p('s_mov_b32 s16, s72\ns_and_b32 s17, s73, 0xffff\ns_mov_b32 s18, %d\ns_mov_b32 s19, 0x20000'%WS_SIZE)
    p('s_cmp_ge_u32 s32, 4\ns_cbranch_scc1 L_X')

    def srd_rest(R):
        R('s_mov_b32 s20, s66\ns_and_b32 s21, s67, 0xffff\ns_mov_b32 s22, %d\ns_mov_b32 s23, 0x20000'%(1792*512*2))
        R('s_mov_b32 s24, s68\ns_and_b32 s25, s69, 0xffff\ns_mov_b32 s26, 0x200000\ns_mov_b32 s27, 0x20000')
        R('s_mov_b32 s28, s70\ns_and_b32 s29, s71, 0xffff\ns_mov_b32 s30, 256\ns_mov_b32 s31, 0x20000')
    uid=[0]
    def poll(R, loadtext, regs, vtmp, lanes_mask=None, cmp_nonzero=False):
        uid[0]+=1; u=uid[0]
        R.wait(vm='all')
        R('s_mov_b32 s5, 0')
        R('L_poll%d:'%u)
        R(loadtext); R('s_waitcnt vmcnt(0)')
        if cmp_nonzero:
            R('v_cmp_eq_u32 vcc, 0, %s'%regs[0])
        else:
            if len(regs)>1:
                R('v_xor_b32 %s, s41, %s'%(vtmp,regs[0]))
                for r in regs[1:]:
                    R('v_xor_b32 %s, s41, %s\nv_or_b32 %s, %s, %s'%(r,r,vtmp,vtmp,r))
                R('v_cmp_ne_u32 vcc, 0, %s'%vtmp)
            else: R('v_cmp_ne_u32 vcc, s41, %s'%regs[0])
        R('s_add_u32 s5, s5, 1')
        R('s_cmp_eq_u64 vcc, 0\ns_cbranch_scc1 L_pollok%d'%u, note='taken')
        R('s_sleep 2\ns_cmp_lt_u32 s5, 0x4000\ns_cbranch_scc1 L_poll%d'%u, note='poll')
        R('L_pollok%d:'%u)
    def get_nonce(R, vt):
        R('v_mov_b32 %s, 0'%vt)
        poll(R,'buffer_load_dword v126, %s, s[28:31], 0 offen sc1'%vt,['v126'],None,cmp_nonzero=True)
        R('v_readfirstlane_b32 s41, v126')
    def rot_stage(R,s,dst):
        R('s_add_u32 %s, s43, %d\ns_and_b32 %s, %s, 15'%(dst,s,dst,dst))

    def w_addrs(R):
        R('v_lshrrev_b32 v10, 2, v3\nv_lshl_add_u32 v10, v4, 3, v10\nv_lshlrev_b32 v10, 6, v10')
        R('v_and_b32 v11, 3, v3\nv_lshl_add_u32 v10, v11, 3, v10\nv_add_u32 v10, 2048, v10')
        R('v_and_b32 v11, 1, v4\nv_lshlrev_b32 v11, 5, v11\nv_xor_b32 v12, 32, v11')
        R('v_add_u32 v12, v10, v12\nv_add_u32 v10, v10, v11\nv_mov_b32 v11, v12')
    def g2(R, nsteps, kb0_sgpr, Wreg, Hregs, nH, accA, accB, recv, vHoff, vEx, vExN, isM, pre_issued, hook=None):
        total=4*nsteps
        issued=[pre_issued]
        def issue(n):
            sg,st=divmod(n,nsteps)
            R('s_add_u32 s4, s%d, %d'%(74+sg,st*1024))
            R.vmem('buffer_load_dwordx4 %s, v%d, s[16:19], s4 offen sc1'%(Hregs(n%nH),vHoff),('h',n))
        for sg in range(4):
            acc=accA if sg%2==0 else accB; prev=accB if sg%2==0 else accA
            mf=[]; fill=[]
            for st in range(nsteps):
                n=sg*nsteps+st
                for t in range(4):
                    def m(n=n,t=t,st=st,acc=acc):
                        if t==0: R.wait(vm=('h',n))
                        c='v[%d:%d]'%(acc+4*t,acc+4*t+3)
                        R('v_mfma_f32_16x16x32_bf16 %s, %s, %s, %s'%(c,Wreg(st,t),Hregs(n%nH),'0' if st==0 else c))
                        if t==3 and issued[0]<total and issued[0]-nH<=n:
                            issue(issued[0]); issued[0]+=1
                    mf.append(m)
            if sg>=1:
                def fin(sg=sg,prev=prev):
                    if sg-1>=1:
                        R.wait(lg='recv')
                        for k in range(8): R('v_pk_add_f32 v[%d:%d], v[%d:%d], v[%d:%d]'%(prev+2*k,prev+2*k+1,prev+2*k,prev+2*k+1,recv+2*k,recv+2*k+1))
                    for t in range(4): R.ds('ds_write_b128 v%d, v[%d:%d] offset:%d'%(vEx,prev+4*t,prev+4*t+3,((sg-1)&1)*4096+t*1024),'send')
                def fin2(sg=sg):
                    R.wait(lg='send'); R.bar()
                    for t in range(4): R.ds('ds_read_b128 v[%d:%d], v%d offset:%d'%(recv+4*t,recv+4*t+3,vExN,((sg-1)&1)*4096+t*1024),'recv')
                k1=3; k2=min(len(mf)-2, 9)
                for i,m in enumerate(mf):
                    m()
                    if i==k1: fin()
                    if i==k2: fin2()
                    if hook and i==len(mf)-1: hook(sg)
            else:
                for i,m in enumerate(mf):
                    m()
                    if hook and i==len(mf)-1: hook(sg)
        R.wait(lg='recv')
        for k in range(8): R('v_pk_add_f32 v[%d:%d], v[%d:%d], v[%d:%d]'%(accB+2*k,accB+2*k+1,accB+2*k,accB+2*k+1,recv+2*k,recv+2*k+1))
        return issue
    def g2_bases(R, kb0):
        for sg in range(4):
            R('s_add_u32 s4, s33, %d\ns_and_b32 s4, s4, 3\ns_lshl2_add_u32 s4, s39, s4\ns_mul_i32 s4, s4, 56\ns_mul_i32 s5, s33, 14\ns_add_u32 s4, s4, s5\ns_add_u32 s4, s4, %d\ns_lshl_b32 s4, s4, 10\ns_add_u32 s%d, s4, %d'%(sg+1,kb0,74+sg,HB))
    def w2_addrs(R, va, vb):
        R('v_lshrrev_b32 v%d, 2, v3\nv_lshl_add_u32 v%d, v4, 2, v%d\nv_lshlrev_b32 v%d, 7, v%d'%(va,vb,va,vb,vb))
        R('v_lshrrev_b32 v%d, 1, v%d\nv_and_b32 v126, 3, v3\nv_lshl_or_b32 v%d, v126, 1, v%d'%(va,va,va,va))
        R('v_xor_b32 v126, 1, v%d\nv_lshl_add_u32 v%d, v%d, 4, v%d\nv_lshl_add_u32 v%d, v126, 4, v%d'%(va,va,va,vb,vb,vb))
    def final_epilogue(R, isM, accB, tX, vFin, vFinN, vYaddr):
        keep=accB+(0 if isM else 8); send=accB+(8 if isM else 0)
        for t in range(2): R.ds('ds_write_b128 v%d, v[%d:%d] offset:%d'%(vFin,send+4*t,send+4*t+3,t*1024),'fs')
        R.wait(lg='fs'); R.bar()
        for t in range(2): R.ds('ds_read_b128 v[%d:%d], v%d offset:%d'%(send+4*t,send+4*t+3,vFinN,t*1024),'fr')
        R.wait(vm='all')
        for t in range(2):
            R.ds('ds_read_b64_tr_b16 v[%d:%d], v%d offset:%d'%(tX+4+2*t,tX+5+2*t,vYaddr,((0 if isM else 2)+t)*128),'yr')
        tmp=tX+8
        for k in range(4):
            R('v_lshlrev_b32 v%d, 16, v%d\nv_and_b32 v%d, 0xffff0000, v%d'%(tmp,tX+k,tmp+1,tX+k))
            R('v_pk_add_f32 v[%d:%d], v[%d:%d], v[%d:%d]'%(keep+2*k,keep+2*k+1,keep+2*k,keep+2*k+1,tmp,tmp+1))
        R.wait(lg='fr')
        for k in range(4): R('v_pk_add_f32 v[%d:%d], v[%d:%d], v[%d:%d]'%(keep+2*k,keep+2*k+1,keep+2*k,keep+2*k+1,send+2*k,send+2*k+1))
        R.wait(lg='yr')
        for k in range(4):
            R('v_lshlrev_b32 v%d, 16, v%d\nv_and_b32 v%d, 0xffff0000, v%d'%(tmp,tX+4+k,tmp+1,tX+4+k))
            R('v_pk_add_f32 v[%d:%d], v[%d:%d], v[%d:%d]'%(keep+2*k,keep+2*k+1,keep+2*k,keep+2*k+1,tmp,tmp+1))
        for k in range(4): R('v_cvt_pk_bf16_f32 v%d, v%d, v%d'%(tX+k,keep+2*k,keep+2*k+1))
    def late_loads(R, isM, tX, vO, vt):
        R('s_lshr_b32 s4, s39, 4\ns_lshl_b32 s4, s4, 9\ns_lshl_b32 s5, s40, 6\ns_add_u32 s4, s4, s5\ns_lshl_b32 s4, s4, 2\ns_add_u32 s6, s4, %d'%FC)
        R('v_lshlrev_b32 v%d, 2, v0'%vt)
        poll(R,'buffer_load_dword v126, v%d, s[16:19], s6 offen sc1'%vt,['v126'],None)
        R('v_lshrrev_b32 v%d, 1, v0\nv_lshlrev_b32 v%d, 12, v%d\nv_and_b32 v126, 1, v0\nv_lshl_add_u32 v%d, v126, 4, v%d'%(vt,vt,vt,vt,vt))
        R('s_lshl_b32 s4, s40, 18\ns_lshl_b32 s5, s39, 7\ns_add_u32 s4, s4, s5\ns_lshl_b32 s5, s33, 5\ns_add_u32 s4, s4, s5\ns_add_u32 s4, s4, %d'%YT)
        R('s_lshl_b32 s5, s33, 14\ns_add_u32 m0, s5, %d'%(12288 if isM else 14336))
        R('s_add_u32 s5, s4, %d'%(32*4096-1024))
        R.vmem('buffer_load_dwordx4 v%d, s[16:19], s4 offen sc1 lds'%vt,'y')
        R.vmem('buffer_load_dwordx4 v%d, s[16:19], s5 offen offset:1024 sc1 lds'%vt,'y')
    def tail(R):
        R.stamp()
        if prof:
            R('s_lshl_b32 s4, s2, 3\ns_add_u32 s4, s4, s32\ns_lshl_b32 s4, s4, 8\ns_add_u32 s4, s4, %d\nv_lshlrev_b32 v126, 2, v0'%PROF)
            R('buffer_store_dword v127, v126, s[16:19], s4 offen')
        R('s_endpgm')

    M=Role(p,'M',prof)
    M.stamp()
    ACC=16; XF=['a[%d:%d]'%(56*0+112+8*b+4*rt,112+8*b+4*rt+3) for b in range(2) for rt in range(2)]
    def WF(b,t): return 56*0+28*b+4*t
    M('s_lshl_b32 s4, s36, 7\ns_lshl_b32 s5, s33, 5\ns_add_u32 s4, s4, s5\ns_lshl_b32 s4, s4, 10')
    M('v_lshlrev_b32 v5, 10, v1\nv_add3_u32 v5, v5, v2, s4')
    M('s_lshl_b32 s7, s33, 12')
    def xdma(s):
        def f0():
            rot_stage(M,s,'s4'); M('s_lshl_b32 s4, s4, 6\ns_add_u32 m0, s7, %d\ns_add_u32 s5, s4, %d'%((s%NS)*SLOT,16384-1024))
            M.vmem('buffer_load_dwordx4 v5, s[8:11], s4 offen lds',('x',s))
        def f1(): M.vmem('buffer_load_dwordx4 v5, s[8:11], s5 offen offset:1024 lds',('x',s))
        return [f0,f1]
    for s in range(NS-1):
        for f in xdma(s): f()
    srd_rest(M)
    w_addrs(M)
    M('v_lshrrev_b32 v6, 3, v3\nv_lshlrev_b32 v6, 1, v6\nv_xor_b32 v6, v6, v4\nv_lshlrev_b32 v6, 4, v6\nv_lshl_add_u32 v6, v3, 6, v6\nv_add_u32 v6, s7, v6')
    M('s_cmp_eq_u32 s42, 1\ns_cselect_b32 s4, 0, 12288\ns_cselect_b64 vcc, -1, 0')
    M('v_cndmask_b32 v12, v10, v11, vcc\nv_add_u32 v12, s4, v12')
    M('s_lshl_b32 s4, s42, 12\nv_add_u32 v10, s4, v10\nv_add_u32 v11, s4, v11')
    def reads(s):
        b=s&1; sl=(s%NS)*SLOT; out=[]
        for rt in range(2): out.append(lambda rt=rt: M.ds('ds_read_b128 %s, v6 offset:%d'%(XF[2*b+rt],sl+rt*1024),('X',s)))
        for t in range(7):
            for hh in range(2):
                r=WF(b,t)+2*hh
                if t<6: out.append(lambda r=r,t=t,hh=hh: M.ds('ds_read_b64_tr_b16 a[%d:%d], v%d offset:%d'%(r,r+1,10+(t&1),sl+(t>>1)*4096+hh*256),('W',s,t)))
                else: out.append(lambda r=r,t=t,hh=hh: M.ds('ds_read_b64_tr_b16 a[%d:%d], v12 offset:%d'%(r,r+1,sl+hh*256),('W',s,t)))
        return out
    def w2_setup(R):
        R('v_lshrrev_b32 v7, 3, v0\nv_bfe_u32 v8, v0, 4, 1\nv_and_b32 v9, 7, v0\nv_xor_b32 v8, v8, v9\nv_lshlrev_b32 v8, 4, v8\nv_lshl_add_u32 v7, v7, 10, v8')
        R('s_lshl_b32 s4, s40, 7\nv_add_u32 v7, s4, v7')
        R('s_mul_i32 s78, s33, %d'%(14*32*1024))
    w2_setup(M)
    M('s_lshl_b32 s79, s33, 13\ns_add_u32 s79, s79, %d'%BOUNCE)
    def w2dma(step, ldsbase_sgpr, ldsoff, tag, R=M):
        out=[]
        for q in range(4):
            def f(q=q):
                if q==0: R('s_add_u32 m0, %s, %d'%(ldsbase_sgpr,ldsoff))
                R('s_add_u32 s4, s78, %d'%(step*32768+q*(8192-1024)))
                R.vmem('buffer_load_dwordx4 v7, s[20:23], s4 offen offset:%d lds'%(q*1024),tag)
            out.append(f)
        return out
    M.wait(vm=('x',0)); M.bar()
    M.stamp()
    for f in reads(0): f()
    ST=72
    def e13a():
        M('s_lshl_b32 s4, s36, 4\ns_lshl2_add_u32 s4, s33, s4\ns_lshl_b32 s4, s4, 2\ns_add_u32 s6, s4, %d'%FA)
        M('v_and_b32 v8, 3, v0\nv_lshlrev_b32 v8, 2, v8\nv_mov_b32 v9, 0')
    def e13b(): M.vmem('buffer_load_dword v124, v9, s[28:31], 0 offen sc1','pf')
    def e13c(): M.vmem('buffer_load_dword v125, v8, s[16:19], s6 offen sc1','pf')
    def e14a():
        M.wait(vm='pf')
        M('s_mov_b32 s5, 0\nL_mchk:\nv_cmp_ne_u32 vcc, v124, v125\nv_readfirstlane_b32 s41, v124\ns_cmp_eq_u32 s41, 0\ns_cselect_b32 s4, 1, 0\ns_or_b32 s4, s4, vcc_lo\ns_cmp_eq_u32 s4, 0')
        M('s_cbranch_scc1 L_mok',note='taken')
        M('s_sleep 2\nbuffer_load_dword v124, v9, s[28:31], 0 offen sc1\nbuffer_load_dword v125, v8, s[16:19], s6 offen sc1\ns_waitcnt vmcnt(0)')
        M('s_add_u32 s5, s5, 1\ns_cmp_lt_u32 s5, 0x4000\ns_cbranch_scc1 L_mchk',note='poll')
        M('L_mok:')
    def e14b():
        M('s_lshl_b32 s4, s36, 7\ns_lshl_b32 s5, s33, 5\ns_add_u32 s4, s4, s5\ns_lshl_b32 s4, s4, 3\ns_add_u32 s6, s4, %d'%STATS)
        M('v_lshlrev_b32 v8, 3, v3')
        M.vmem('buffer_load_dwordx2 v[%d:%d], v8, s[16:19], s6 offen sc1'%(ST,ST+1),'st')
    def e14c(): M.vmem('buffer_load_dwordx2 v[%d:%d], v8, s[16:19], s6 offen offset:128 sc1'%(ST+2,ST+3),'st')
    extra={13:[e13a,e13b,e13c],14:[e14a,e14b,e14c],15:w2dma(0,'s79',0,('w2',0))+w2dma(1,'s79',4096,('w2',1))}
    for s in range(16):
        if s<15:
            M.wait(vm=('x',s+1)); M.bar()
        b=s&1; mf=[]
        for t in range(7):
            for rt in range(2):
                def m(t=t,rt=rt):
                    if rt==0: M.wait(lg=('W',s,t))
                    a=ACC+(t*2+rt)*4; c='v[%d:%d]'%(a,a+3)
                    M('v_mfma_f32_16x16x32_bf16 %s, a[%d:%d], %s, %s'%(c,WF(b,t),WF(b,t)+3,XF[2*b+rt],'0' if s==0 else c))
                mf.append(m)
        fill=[]
        if s<15: fill+=reads(s+1)
        if s+NS-1<16: fill+=xdma(s+NS-1)
        if s in extra: fill+=extra[s]
        interleave(M,mf,fill,per=(1 if s==15 else 2))
    M.stamp()
    M.bar()
    M.stamp()
    CSR=76
    M('v_lshlrev_b32 v8, 4, v4\nv_add_u32 v8, %d, v8'%CS)
    for t in range(7): M.ds('ds_read_b128 v[%d:%d], v8 offset:%d'%(CSR+4*t,CSR+4*t+3,64*t),('cs',t))
    w2_addrs(M,13,14)
    M('v_add_u32 v13, s79, v13\nv_add_u32 v14, s79, v14')
    def W2M(step,t):
        if step<8: return 'a[%d:%d]'%(16*step+4*t,16*step+4*t+3)
        return 'v[%d:%d]'%(W2V+16*(step-8)+4*t,W2V+16*(step-8)+4*t+3)
    W2V=16
    def w2reads(R,step,slot,Wname,va,vb):
        for t in range(4):
            for hh in range(2):
                reg=Wname(step,t); m_=re.match(r'([av])\[(\d+):',reg); r0=int(m_.group(2))+2*hh
                R.ds('ds_read_b64_tr_b16 %s[%d:%d], v%d offset:%d'%(m_.group(1),r0,r0+1,(va if t<2 else vb),slot*4096+hh*2048+8*(t&1)),('w2r',step))
    M('s_mul_i32 s4, s37, 7\ns_sub_u32 s4, s4, s42\ns_lshr_b32 s4, s4, 1')
    M('s_lshl_b32 s5, s36, 3\ns_lshl1_add_u32 s5, s33, s5\ns_mul_i32 s5, s5, 56\ns_add_u32 s4, s4, s5\ns_lshl_b32 s4, s4, 10\ns_add_u32 s81, s4, %d'%HB)
    M('s_lshl_b32 s4, s42, 10\ns_add_u32 s82, s81, s4')
    M('s_cmp_eq_u32 s42, 1\ns_cselect_b32 s4, 8, 3072\ns_add_u32 s83, s81, s4')
    M('v_lshlrev_b32 v9, 4, v0')
    M.wait(vm='st')
    PK=104
    for rt in range(2):
        st='v[%d:%d]'%(ST+2*rt,ST+2*rt+1)
        for pr in range(4):
            tiles=[2*pr,2*pr+1] if pr<3 else [6]
            pk=PK+4*((rt*4+pr)&1)
            for ti,t in enumerate(tiles):
                if rt==0: M.wait(lg=('cs',t))
                a=ACC+(t*2+rt)*4
                for k in range(2):
                    M('v_pk_mul_f32 v[112:113], v[%d:%d], %s op_sel:[0,1] op_sel_hi:[1,1]'%(CSR+4*t+2*k,CSR+4*t+2*k+1,st))
                    M('v_pk_fma_f32 v[112:113], v[%d:%d], %s, v[112:113] op_sel:[0,0,0] op_sel_hi:[1,0,1]'%(a+2*k,a+2*k+1,st))
                    M('v_cvt_pk_bf16_f32 v%d, v112, v113'%(pk+2*ti+k))
                    M('v_pk_max_i16 v%d, v%d, 0'%(pk+2*ti+k,pk+2*ti+k))
            if pr<3:
                M('s_add_u32 s4, s82, %d'%(rt*56*1024+pr*1024))
                M.vmem('buffer_store_dwordx4 v[%d:%d], v9, s[16:19], s4 offen sc1'%(pk,pk+3),'hst')
            else:
                M('s_add_u32 s4, s83, %d'%(rt*56*1024))
                M.vmem('buffer_store_dwordx2 v[%d:%d], v9, s[16:19], s4 offen sc1'%(pk,pk+1),'hst')
    M.bar()
    M.stamp()
    M.wait(vm=('w2',0)); w2reads(M,0,0,W2M,13,14); M.wait(lg='all')
    for f in w2dma(2,'s79',0,('w2',2)): f()
    M.wait(vm=('w2',1)); w2reads(M,1,1,W2M,13,14); M.wait(lg='all')
    for f in w2dma(3,'s79',4096,('w2',3)): f()
    M.wait(vm='hst')
    M('s_lshr_b32 s4, s33, 1\ns_lshl1_add_u32 s4, s36, s4\ns_lshl_b32 s4, s4, 7\ns_and_b32 s5, s33, 1\ns_lshl_b32 s5, s5, 4\ns_add_u32 s5, s5, s37\ns_lshl2_add_u32 s4, s5, s4\ns_add_u32 s4, s4, %d'%FB)
    M('v_mov_b32 v8, 0\nv_mov_b32 v15, s41\ns_mov_b64 exec, 1')
    M.vmem('buffer_store_dword v15, v8, s[16:19], s4 offen sc1','fl')
    M('s_mov_b64 exec, -1')
    M.stamp()
    for step in range(2,10):
        M.wait(vm=('w2',step)); w2reads(M,step,step&1,W2M,13,14)
        if step+2<10:
            M.wait(lg='all')
            for f in w2dma(step+2,'s79',(step&1)*4096,('w2',step+2)): f()
    M.stamp()
    g2_bases(M,0)
    M('s_lshl_b32 s4, s39, 7\ns_add_u32 s6, s4, %d\nv_and_b32 v8, 31, v0\nv_lshlrev_b32 v8, 2, v8'%FB)
    poll(M,'buffer_load_dword v126, v8, s[16:19], s6 offen sc1',['v126'],None)
    M.stamp()
    HM=48; nHM=6
    accA=72; accB=88; recv=104
    HregM=lambda k:'v[%d:%d]'%(HM+4*k,HM+4*k+3)
    for n in range(nHM):
        M('s_add_u32 s4, s74, %d'%(n*1024))
        M.vmem('buffer_load_dwordx4 %s, v9, s[16:19], s4 offen sc1'%HregM(n),('h',n))
    def ex_addrs(R,vEx,vExN,vFin,vFinN,vY,vO,grp):
        sh,base=(13,BOUNCE) if grp==0 else (14,RING)
        R('s_lshl_b32 s4, s33, %d\ns_add_u32 s4, s4, %d\nv_lshlrev_b32 v126, 4, v0\nv_add_u32 v%d, s4, v126'%(sh,base,vEx))
        R('s_add_u32 s4, s33, 1\ns_and_b32 s4, s4, 3\ns_lshl_b32 s4, s4, %d\ns_add_u32 s4, s4, %d\nv_add_u32 v%d, s4, v126'%(sh,base,vExN))
        R('s_lshl_b32 s4, s33, 14\nv_add_u32 v126, s4, v126\nv_add_u32 v%d, %d, v126\nv_add_u32 v%d, %d, v126'%(vFin,10240 if grp==0 else 8192,vFinN,8192 if grp==0 else 10240))
        R('v_lshrrev_b32 v%d, 2, v3\nv_lshl_add_u32 v%d, v4, 4, v%d\nv_lshlrev_b32 v%d, 5, v%d\nv_and_b32 v126, 3, v3\nv_lshl_add_u32 v%d, v126, 3, v%d'%(vY,vY,vY,vY,vY,vY,vY))
        R('s_lshl_b32 s4, s33, 14\ns_add_u32 s4, s4, %d\nv_add_u32 v%d, s4, v%d'%(12288 if grp==0 else 14336,vY,vY))
        R('s_lshl_b32 s4, s39, 16\ns_lshl_b32 s5, s33, 14\ns_add_u32 s4, s4, s5\ns_lshl_b32 s5, s40, 7\ns_add_u32 s4, s4, s5\ns_add_u32 s4, s4, %d'%(16*grp))
        R('v_lshlrev_b32 v%d, 10, v3\nv_lshl_add_u32 v%d, v4, 5, v%d\nv_add_u32 v%d, s4, v%d'%(vO,vO,vO,vO,vO))
    ex_addrs(M,5,6,7,10,11,12,0)
    M.wait(lg='all')
    M.bar()
    M.stamp()
    g2(M,10,None,W2M,HregM,nHM,accA,accB,recv,9,5,6,True,nHM)
    M.stamp()
    M.vmem('buffer_load_dwordx4 v[48:51], v12, s[8:11], 0 offen','xo')
    late_loads(M,True,48,12,8)
    final_epilogue(M,True,accB,48,7,10,11)
    M('buffer_store_dwordx4 v[48:51], v12, s[24:27], 0 offen')
    tail(M)

    p('L_X:')
    X=Role(p,'X',prof)
    X.stamp()
    srd_rest(X)
    X('s_cmp_lg_u32 s2, 0\ns_cbranch_scc1 L_nononce\ns_cmp_lg_u32 s32, 4\ns_cbranch_scc1 L_nononce')
    X('s_memrealtime s[90:91]\ns_waitcnt lgkmcnt(0)\ns_or_b32 s90, s90, 1\nv_mov_b32 v8, s90\nv_mov_b32 v9, 0\ns_mov_b64 exec, 1')
    X('buffer_store_dword v8, v9, s[28:31], 0 offen sc1\ns_mov_b64 exec, -1')
    X('L_nononce:')
    X('s_lshl_b32 s4, s38, 13\ns_lshl_b32 s5, s33, 8\ns_add_u32 s4, s4, s5\nv_lshl_add_u32 v5, v0, 2, s4')
    for r in range(4): X.vmem('buffer_load_dword v%d, v5, s[8:11], 0 offen offset:%d'%(16+r,r*1024),'ln')
    X('s_movk_i32 s4, 0x1000')
    for r in range(4): X.vmem('buffer_load_dword v%d, v5, s[8:11], s4 offen offset:%d'%(20+r,r*1024),'ln')
    X('s_mul_i32 s4, s37, 224\ns_lshl_b32 s5, s42, 5\ns_sub_u32 s4, s4, s5\ns_lshl_b32 s5, s33, 6\ns_add_u32 s4, s4, s5')
    X('v_mul_u32_u24 v7, 3584, v1\nv_add3_u32 v7, v7, v2, s4')
    X('s_lshl_b32 s7, s33, 12')
    def wdma(s):
        rot_stage(X,s,'s4'); X('s_mul_i32 s4, s4, %d\ns_add_u32 m0, s7, %d\ns_add_u32 s5, s4, %d'%(32*3584,(s%NS)*SLOT,57344-1024))
        X.vmem('buffer_load_dwordx4 v7, s[12:15], s4 offen offset:2048 lds',('w',s))
        X.vmem('buffer_load_dwordx4 v7, s[12:15], s5 offen offset:3072 lds',('w',s))
    wdma(0)
    X('s_lshr_b32 s84, s33, 1\ns_lshl1_add_u32 s85, s38, s84')
    X('s_lshl_b32 s4, s85, 8\ns_and_b32 s86, s33, 1\ns_lshl_b32 s5, s86, 7\ns_add_u32 s4, s4, s5\nv_lshl_add_u32 v6, v0, 1, s4')
    for k in range(6): X.vmem('global_load_short_d16_hi v%d, v6, s[%d:%d]'%(24+k,46+2*k,47+2*k),'par')
    X('s_lshl_b32 s4, s38, 2\ns_load_dword s87, s[58:59], s4\ns_load_dword s88, s[60:61], s4')
    for s in range(1,NS-1): wdma(s)
    w_addrs(X)
    X('s_cmp_eq_u32 s86, 1\ns_cselect_b64 vcc, -1, 0\nv_cndmask_b32 v12, v10, v11, vcc')
    X('s_add_u32 s4, s42, s84\ns_lshl_b32 s4, s4, 12\nv_add_u32 v13, s4, v12')
    X('s_add_u32 s4, s42, 2\ns_lshl_b32 s4, s4, 12\nv_add_u32 v14, s4, v12')
    X('s_cmp_eq_u32 s42, 1\ns_cselect_b32 s4, 0, 12288\ns_cselect_b64 vcc, -1, 0\nv_cndmask_b32 v12, v10, v11, vcc\nv_add_u32 v12, s4, v12')
    X('s_cmp_ge_u32 s33, 2\ns_cselect_b64 vcc, -1, 0\nv_cndmask_b32 v14, v14, v12, vcc')
    for k in range(4): X('v_accvgpr_write_b32 a%d, 0x3f803f80'%(124+k)) if False else X('v_mov_b32 v%d, 0x3f803f80'%(120+k))
    ONES='v[120:123]'; CSA=112
    X('v_mov_b32 v8, 0\nv_mov_b32 v9, 0\nv_mov_b32 v10, 0\nv_mov_b32 v11, 0')
    X('s_lshl_b32 s4, s33, 11\nv_lshl_add_u32 v12, v0, 4, s4')
    X('v_add_u32 v12, %d, v12'%TAB)
    X.ds('ds_write_b128 v12, v[8:11]','z'); X.ds('ds_write_b128 v12, v[8:11] offset:1024','z')
    X('v_lshlrev_b32 v12, 2, v0\nv_add_u32 v12, %d, v12'%(TAB+8192-224))
    X.ds('ds_write_b32 v12, v8','z')
    X('s_mul_i32 s4, s33, %d\ns_add_u32 s4, s4, %d\nv_lshl_add_u32 v12, v0, 2, s4'%(2*KCOPY,KC+4096))
    X.ds('ds_write_b32 v12, v8','z'); X.ds('ds_write_b32 v12, v8 offset:%d'%KCOPY,'z')

    F=[]
    def f(txt): F.append(lambda: X(txt))
    def fl(txt):
        for t in txt.strip().split('\n'): f(t)
    def fds(txt,tag): F.append(lambda: X.ds(txt,tag))
    def fvm(txt,tag): F.append(lambda: X.vmem(txt,tag))
    def fw(vm=None,lg=None): F.append(lambda: X.wait(vm=vm,lg=lg))
    X.wait(vm='ln')
    X.stamp()
    LO=32; HI=40; V=48
    for r in range(8):
        X('v_lshlrev_b32 v%d, 16, v%d\nv_and_b32 v%d, 0xffff0000, v%d'%(LO+r,16+r,HI+r,16+r))
    for r in range(8):
        X('v_add_f32 v%d, v%d, v%d\nv_mul_f32 v%d, v%d, v%d\nv_fmac_f32 v%d, v%d, v%d'%(V+r,LO+r,HI+r,V+8+r,LO+r,LO+r,V+8+r,HI+r,HI+r))
    for k in range(8): X('v_permlane32_swap_b32 v%d, v%d'%(V+k,V+8+k))
    for k in range(8): X('v_add_f32 v%d, v%d, v%d'%(V+k,V+k,V+8+k))
    for k in range(4): X('v_permlane16_swap_b32 v%d, v%d'%(V+k,V+4+k))
    for k in range(4): X('v_add_f32 v%d, v%d, v%d'%(V+k,V+k,V+4+k))
    for sh in (8,4,2,1):
        for k in range(4): X('v_add_f32_dpp v%d, v%d, v%d row_ror:%d row_mask:0xf bank_mask:0xf'%(V+k,V+k,V+k,sh))
    X('s_lshl_b32 s4, s33, 6\ns_add_u32 s4, s4, %d\nv_lshl_add_u32 v12, v4, 4, s4'%RED)
    X.ds('ds_write_b128 v12, v[%d:%d]'%(V,V+3),'red')
    X.wait(vm=('w',0),lg='all'); X.bar()
    X.stamp()
    fl('v_and_b32 v12, 7, v0\nv_lshlrev_b32 v12, 2, v12\nv_add_u32 v12, %d, v12'%RED)
    for w in range(4):
        fds('ds_read2_b32 v[%d:%d], v12 offset0:%d offset1:%d'%(V+2*w,V+2*w+1,16*w,16*w+8),'redr')
    fw(lg='redr')
    fl('v_pk_add_f32 v[48:49], v[48:49], v[50:51]\nv_pk_add_f32 v[52:53], v[52:53], v[54:55]\nv_pk_add_f32 v[48:49], v[48:49], v[52:53]')
    fl('v_mul_f32 v48, 0x3b000000, v48\nv_mul_f32 v49, 0x3b000000, v49\nv_fma_f32 v49, -v48, v48, v49\nv_max_f32 v49, 0, v49')
    fl('v_cvt_pk_bf16_f32 v50, v48, v49\nv_lshlrev_b32 v48, 16, v50\nv_and_b32 v49, 0xffff0000, v50')
    fl('v_add_f32 v49, 0x3727c5ac, v49\nv_cvt_pk_bf16_f32 v49, v49, v49\nv_and_b32 v49, 0xffff0000, v49\nv_sqrt_f32 v49, v49')
    fl('v_cvt_pk_bf16_f32 v49, v49, v49\nv_and_b32 v49, 0xffff0000, v49\nv_rcp_f32 v50, v49')
    fl('v_fma_f32 v51, -v49, v50, 1.0\nv_fma_f32 v50, v51, v50, v50\nv_mul_f32 v51, -v48, v50')
    for r in range(8): fl('v_readlane_b32 s%d, v48, %d\nv_readlane_b32 s%d, v50, %d'%(44+r,r,52+r,r))
    for base in (LO,HI):
        for k in range(4): f('v_pk_add_f32 v[%d:%d], v[%d:%d], s[%d:%d] neg_lo:[0,1] neg_hi:[0,1]'%(base+2*k,base+2*k+1,base+2*k,base+2*k+1,44+2*k,45+2*k))
        for k in range(4): f('v_cvt_pk_bf16_f32 v%d, v%d, v%d'%(base+2*k+1,base+2*k,base+2*k+1))
        for k in range(4): fl('v_lshlrev_b32 v%d, 16, v%d\nv_and_b32 v%d, 0xffff0000, v%d'%(base+2*k,base+2*k+1,base+2*k+1,base+2*k+1))
        for k in range(4): f('v_pk_mul_f32 v[%d:%d], v[%d:%d], s[%d:%d]'%(base+2*k,base+2*k+1,base+2*k,base+2*k+1,52+2*k,53+2*k))
        o=16 if base==LO else 20
        for k in range(4): f('v_cvt_pk_bf16_f32 v%d, v%d, v%d'%(o+k,base+2*k,base+2*k+1))
    fl('s_lshl_b32 s4, s38, 13\ns_lshl_b32 s5, s33, 11\ns_add_u32 s4, s4, s5\nv_lshl_add_u32 v12, v0, 5, s4')
    fvm('buffer_store_dwordx4 v[16:19], v12, s[16:19], 0 offen sc1','lnst')
    fvm('buffer_store_dwordx4 v[20:23], v12, s[16:19], 0 offen offset:16 sc1','lnst')
    fl('s_lshl_b32 s4, s38, 6\ns_add_u32 s4, s4, %d\ns_cmp_eq_u32 s33, 0\ns_cselect_b32 s4, s4, %d\nv_lshlrev_b32 v12, 3, v0\ns_mov_b64 exec, 0xff'%(STATS,WS_SIZE))
    fvm('buffer_store_dwordx2 v[50:51], v12, s[16:19], s4 offen sc1','lnst')
    f('s_mov_b64 exec, -1')
    f('v_mov_b32 v12, 0')
    fvm('buffer_load_dword v124, v12, s[28:31], 0 offen sc1','lnst')
    F.append('MARK_LNST')
    fw(vm='par')
    f('s_waitcnt lgkmcnt(0)')
    F.append(lambda: setattr(X,'lg',[]))
    for k in range(6): f('v_and_b32 v%d, 0xffff0000, v%d'%(24+k,24+k))
    fl('s_lshl_b32 s4, s84, 4\ns_lshr_b32 s87, s87, s4\ns_lshl_b32 s87, s87, 16\ns_lshr_b32 s88, s88, s4\ns_lshl_b32 s88, s88, 16')
    fl('v_mov_b32 v30, s87\nv_mul_f32 v30, 0x3fb8aa3b, v30\nv_exp_f32 v30, v30\nv_cvt_pk_bf16_f32 v30, v30, v30\nv_and_b32 v30, 0xffff0000, v30')
    fl('v_mul_f32 v24, v24, v30\nv_mul_f32 v25, v25, v30\nv_mul_f32 v24, 0x3fb8aa3b, v24\nv_mul_f32 v25, 0.15915494, v25')
    fl('v_pk_mul_f32 v[32:33], v[28:29], v[26:27] op_sel:[0,0] op_sel_hi:[0,1]\nv_pk_fma_f32 v[32:33], v[28:29], v[26:27], v[32:33] op_sel:[1,1,0] op_sel_hi:[1,0,1] neg_lo:[1,0,0]')
    fl('v_mul_f32 v32, v32, v30\nv_mul_f32 v33, v33, v30')
    def zpow(dst,pw):
        lit={1:None,8:'0x41000000',256:'0x43800000'}[pw]
        if lit: fl('v_mul_f32 v44, %s, v24\nv_mul_f32 v45, %s, v25\nv_fract_f32 v45, v45\nv_exp_f32 v44, v44'%(lit,lit))
        else: fl('v_fract_f32 v45, v25\nv_exp_f32 v44, v24')
        fl('v_cos_f32 v%d, v45\nv_sin_f32 v%d, v45\nv_mul_f32 v%d, v%d, v44\nv_mul_f32 v%d, v%d, v44'%(dst,dst+1,dst,dst,dst+1,dst+1))
    Z1,Z8,Z256=34,36,38
    zpow(Z8,8); zpow(Z1,1); zpow(Z256,256)
    def cmul(d,a,b):
        fl('v_pk_mul_f32 v[46:47], v[%d:%d], v[%d:%d] op_sel:[0,0] op_sel_hi:[0,1]\nv_pk_fma_f32 v[%d:%d], v[%d:%d], v[%d:%d], v[46:47] op_sel:[1,1,0] op_sel_hi:[1,0,1] neg_lo:[1,0,0]'%(a,a+1,b,b+1,d,d+1,a,a+1,b,b+1))
    fl('s_mul_i32 s4, s33, %d\ns_add_u32 s4, s4, %d\nv_lshl_add_u32 v12, v0, 2, s4'%(SCRW,SCR))
    fl('v_mul_u32_u24 v15, 288, v3\nv_lshl_add_u32 v15, v4, 4, v15\nv_add_u32 v15, s4, v15')
    tog=[0]
    def put(row,src,neg):
        t=48+tog[0]; tog[0]^=1
        f('v_cvt_pk_bf16_f32 v%d, v%d, %sv%d'%(t,src,'-' if neg else '',src+1))
        fds('ds_write_b32 v12, v%d offset:%d'%(t,row*288),'kw')
    def frags(areg):
        for ks in range(4): fds('ds_read_b128 a[%d:%d], v15 offset:%d'%(areg+4*ks,areg+4*ks+3,64*ks),('kf',areg))
    fl('v_mov_b32 v40, 1.0\nv_mov_b32 v41, 0')
    for q in range(32):
        put(q&15,40,False)
        if q<31: cmul(40,40,Z8)
        if q in(15,31): frags(16*(q>>4))
    KEEP={0:50,2:52,4:54,6:56}
    fl('v_mov_b32 v50, v32\nv_mov_b32 v51, v33')
    cur=50
    for h in range(8):
        put(h,cur,True)
        if h<7:
            nxt=KEEP.get(h+1,40); cmul(nxt,cur,Z1); cur=nxt
    cmul(42,Z256,Z256)
    for k,h in enumerate((0,2,4,6)):
        cmul(40,KEEP[h],Z256); put(8+k,40,True)
    cmul(58,50,42); put(12,58,True)
    cmul(60,54,42); put(13,60,True)
    cmul(58,58,Z256); put(14,58,True)
    cmul(60,60,Z256); put(15,60,True)
    frags(32)
    KA=64
    def kmf(ht):
        for qt in range(2):
            for ks in range(4):
                c='v[%d:%d]'%(KA+8*ht+4*qt,KA+8*ht+4*qt+3)
                f('v_mfma_f32_16x16x32_bf16 %s, a[%d:%d], a[%d:%d], %s'%(c,32+16*ht+4*ks,35+16*ht+4*ks,16*qt+4*ks,16*qt+4*ks+3,'0' if ks==0 else c))
    for k in range(5):
        cmul(58,58,Z256); put(k,58,True)
    frags(48)
    fw(lg=('kf',32)); kmf(0)
    fl('s_mul_i32 s89, s84, %d\ns_add_u32 s89, s89, %d'%(TABCH,TAB+16))
    fl('v_lshlrev_b32 v44, 3, v3\nv_lshl_add_u32 v44, v4, 2, v44\nv_mov_b32 v45, 2\nv_mov_b32 v46, 128')
    fl('v_cmp_eq_u32 vcc, 2, v4\nv_lshl_add_u32 v47, v3, 2, 0\nv_add_u32 v47, 256, v47\nv_cndmask_b32 v44, v44, v47, vcc\nv_cndmask_b32 v46, v46, 64, vcc')
    fl('v_cmp_eq_u32 vcc, 3, v4\nv_lshlrev_b32 v47, 1, v3\nv_add_u32 v47, 384, v47\nv_cndmask_b32 v44, v44, v47, vcc\nv_cndmask_b32 v46, v46, 32, vcc\nv_cndmask_b32 v45, v45, 64, vcc')
    fl('v_add_u32 v45, v44, v45\nv_lshl_add_u32 v44, v44, 2, s89\nv_lshl_add_u32 v45, v45, 2, s89\nv_lshlrev_b32 v46, 2, v46')
    fw(lg=('kf',48)); kmf(1)
    for qt in range(2):
        a=KA+4*qt
        fds('ds_add_f32 v44, v%d'%a,'ka'); fds('ds_add_f32 v44, v%d offset:4'%(a+1),'ka')
        fds('ds_add_f32 v45, v%d'%(a+2),'ka'); fds('ds_add_f32 v45, v%d offset:4'%(a+3),'ka')
        if qt==0: fl('v_add_u32 v44, v44, v46\nv_add_u32 v45, v45, v46')
    fl('v_lshl_add_u32 v44, v4, 7, v3\nv_lshl_add_u32 v44, v44, 2, s89')
    for qt in range(2):
        for r in range(4): fds('ds_add_f32 v44, v%d offset:%d'%(KA+8+4*qt+r,2048+128*r+64*qt),'ka')
    GA=16; GV=80;
    fl('s_lshl_b32 s4, s86, 10\ns_sub_u32 s4, 2047, s4\nv_lshlrev_b32 v44, 4, v0\nv_sub_u32 v44, s4, v44\nv_cvt_f32_i32 v46, v44\nv_add_f32 v47, -1.0, v46')
    fl('s_mov_b32 s90, 0xc0000000\ns_mov_b32 s91, 0xc0000000')
    for m_ in range(10):
        f('v_cvt_pk_bf16_f32 v45, v46, v47')
        if m_<9: f('v_pk_add_f32 v[46:47], v[46:47], s[90:91]')
        f('v_lshlrev_b32_sdwa v%d, 2, v45 dst_sel:DWORD dst_unused:UNUSED_PAD src0_sel:DWORD src1_sel:WORD_0'%(GA+2*m_))
        if m_<9: f('v_lshlrev_b32_sdwa v%d, 2, v45 dst_sel:DWORD dst_unused:UNUSED_PAD src0_sel:DWORD src1_sel:WORD_1'%(GA+2*m_+1))
    fl('v_lshl_add_u32 v44, v44, 2, s89\nv_add_u32 v44, -76, v44')
    fl('s_sub_u32 s89, s89, %d'%(4*17024))
    for e in range(19): f('v_add_u32 v%d, s89, v%d'%(GA+e,GA+e))
    fw(lg='all'); F.append('BAR')
    fl('s_cmp_eq_u32 s86, 0\ns_cselect_b32 s93, -1, 0xffff\ns_mov_b32 s92, -1\ns_mov_b64 exec, s[92:93]')
    for e in range(19): fds('ds_read_b32 v%d, v%d'%(GV+19-e,GA+e),'kg')
    fl('s_not_b64 exec, s[92:93]\ns_cbranch_execz L_nodirect')
    for k in range(5): fds('ds_read_b128 v[%d:%d], v44 offset:%d'%(GV+4*k,GV+4*k+3,16*k),'kg')
    fl('L_nodirect:\ns_mov_b64 exec, -1')
    fl('s_mul_i32 s4, s84, %d\ns_lshl_b32 s5, s86, 11\ns_add_u32 s4, s4, s5\ns_add_u32 s4, s4, %d\nv_lshl_add_u32 v44, v0, 5, s4'%(KCH,KC))
    fw(lg='all')
    D=16; E=26
    val=lambda e:'v%d'%(GV+19-e)
    for m_ in range(9): f('v_cvt_pk_bf16_f32 v%d, %s, %s'%(D+m_,val(2*m_),val(2*m_+1)))
    for m_ in range(9): f('v_cvt_pk_bf16_f32 v%d, %s, %s'%(E+m_,val(2*m_+1),val(2*m_+2)))
    for rho,src in ((0,D),(1,E)):
        fds('ds_write_b128 v44, v[%d:%d] offset:%d'%(src,src+3,rho*KCOPY),'kc'); fds('ds_write_b128 v44, v[%d:%d] offset:%d'%(src+4,src+7,rho*KCOPY+16),'kc')
    fl('v_add_u32 v45, %d, v44\nv_add_u32 v46, %d, v44'%(2*KCOPY,3*KCOPY))
    for va,src in ((45,D),(46,E)):
        for k in range(4): fds('ds_write2_b32 v%d, v%d, v%d offset0:%d offset1:%d'%(va,src+1+2*k,src+2+2*k,2*k,2*k+1),'kc')
    def ones_reads(s):
        sl=(s%NS)*SLOT; b=s&1
        for k,va in enumerate((13,14)):
            for hh in range(2):
                r=96+16*b+4*k+2*hh
                X.ds('ds_read_b64_tr_b16 a[%d:%d], v%d offset:%d'%(r,r+1,va,sl+hh*256),('o',s))
    def ones_mf(s):
        b=s&1; X.wait(lg=('o',s))
        for k in range(2):
            c='v[%d:%d]'%(CSA+4*k,CSA+4*k+3)
            X('v_mfma_f32_16x16x32_bf16 %s, a[%d:%d], %s, %s'%(c,96+16*b+4*k,96+16*b+4*k+3,ONES,'0' if s==0 else c))
    ones_reads(0)
    lnst_tick=[None]; flagged=[False]
    def run_fill(n):
        k=0
        while F and k<n:
            if F[0]=='BAR': return
            x=F.pop(0)
            if x=='MARK_LNST': lnst_tick[0]='pending'; continue
            x(); k+=1
    def safe_fill(n):
        run_fill(n)
        def exec_dirty():
            for ins in reversed(p.L):
                if ins.op in('s_mov_b64','s_not_b64') and ins.ops[0]=='exec': return ins.ops[1]!='-1' or ins.op=='s_not_b64'
            return False
        while exec_dirty(): run_fill(1)
    for s in range(15):
        safe_fill(tickfill)
        X.wait(vm=('w',s+1))
        covered = lnst_tick[0]=='pending' and 'lnst' not in X.vm
        if F and F[0]=='BAR': F.pop(0)
        X.bar()
        if s+NS-1<16: wdma(s+NS-1)
        ones_mf(s); ones_reads(s+1)
        if covered and not flagged[0]:
            flagged[0]=True
            X('v_readfirstlane_b32 s41, v124\ns_cmp_lg_u32 s41, 0')
            X('s_cbranch_scc1 L_havenonce',note='taken')
            sv=list(X.vm); get_nonce(X,'v8'); X.vm=sv
            X('L_havenonce:')
            X('s_lshl_b32 s4, s38, 2\ns_add_u32 s4, s4, %d\ns_cmp_eq_u32 s33, 0\ns_cselect_b32 s4, s4, %d\nv_mov_b32 v9, s41\nv_mov_b32 v8, 0\ns_mov_b64 exec, 1'%(FA,WS_SIZE))
            X.vmem('buffer_store_dword v9, v8, s[16:19], s4 offen sc1','fl')
            X('s_mov_b64 exec, -1')
            print('LN flag published after tick',s)
    assert flagged[0]
    ones_mf(15)
    X.stamp()
    X('s_lshl_b32 s4, s33, 6\ns_add_u32 s4, s4, %d\nv_lshl_add_u32 v12, v4, 4, s4'%CS)
    X.ds('ds_write_b128 v12, v[%d:%d]'%(CSA,CSA+3),'cs'); X.ds('ds_write_b128 v12, v[%d:%d] offset:256'%(CSA+4,CSA+7),'cs')
    X.wait(lg='all')
    if F and F[0]=='BAR': F.pop(0)
    X.bar()
    print('filler left after G1:',len(F))
    assert 'BAR' not in F
    run_fill(10**6)
    X.stamp()
    X('v_lshlrev_b32 v8, 4, v0\ns_mov_b32 s6, %d'%FA)
    X('s_mov_b32 s60, s16\ns_mov_b32 s61, s17\ns_mov_b32 s62, 0x200000\ns_mov_b32 s63, 0x20000')
    poll(X,'buffer_load_dwordx4 v[16:19], v8, s[16:19], s6 offen sc1',['v16','v17','v18','v19'],'v20')
    X.stamp()
    X('s_lshl_b32 s4, s86, 8\nv_add_u32 v8, s4, v0')
    X('s_mul_i32 s5, s84, %d\ns_lshl_b32 s4, s86, 12\ns_add_u32 s5, s5, s4\ns_add_u32 s5, s5, %d'%(UCH,UI))
    X('s_lshl_b32 s6, s85, 4\ns_mov_b32 s4, 0xcccd')
    for k in range(4):
        X('v_mul_u32_u24 v9, s4, v8\nv_lshrrev_b32 v9, 19, v9\nv_lshlrev_b32 v9, 1, v9\nv_sub_u32 v9, v8, v9')
        X('v_add_u32 v9, -120, v9\nv_lshlrev_b32 v9, 13, v9\ns_add_u32 m0, s5, %d'%(1024*k))
        if k==3:
            X('s_cmp_eq_u32 s86, 0\ns_cselect_b32 s92, -1, 0x3fffff\ns_cselect_b32 s93, -1, 0\ns_mov_b64 exec, s[92:93]')
        X.vmem('buffer_load_dwordx4 v9, s[60:63], s6 offen sc1 lds','u')
        if k==3: X('s_mov_b64 exec, -1')
        else: X('v_add_u32 v8, 64, v8')
    w2_setup(X)
    X('s_lshl_b32 s80, s33, 14')
    for k in range(4):
        for f_ in w2dma(10+k,'s80',k*4096,'w2x',R=X): f_()
    X('v_sub_u32 v8, 3, v3\nv_and_b32 v8, 3, v8\nv_mul_u32_u24 v13, %d, v8\nv_lshlrev_b32 v9, 1, v3\nv_sub_u32 v13, v13, v9\nv_lshl_add_u32 v13, v4, 4, v13'%(KCOPY-2))
    X('s_mul_i32 s4, s84, %d\ns_add_u32 s4, s4, %d'%(KCH,KC+2*2079-32))
    X('s_movk_i32 s5, %d\ns_cmp_eq_u32 s86, 0\ns_cselect_b32 s5, s5, %d\ns_sub_u32 s4, s4, s5\nv_add_u32 v13, s4, v13'%(64*64,64*24))
    X('v_mul_u32_u24 v14, 10, v3\nv_add_lshl_u32 v14, v14, v4, 4')
    X('s_mul_i32 s95, s84, %d\ns_add_u32 s95, s95, %d'%(UCH,UI))
    X('s_cmp_eq_u32 s86, 0\ns_cselect_b32 s5, %d, %d\ns_add_u32 s4, s95, s5\nv_add_u32 v14, s4, v14'%(0,16*40))
    CA=16
    for r in range(32): X('v_mov_b32 v%d, 0'%(CA+r))
    X.wait(vm='u',lg='all'); X.bar()
    X.stamp()
    if dump=='K':
        X('s_cmp_lg_u32 s33, 0\ns_cbranch_scc1 L_nodump')
        X('s_mul_i32 s4, s2, %d\ns_add_u32 s4, s4, 0x1000000\nv_lshlrev_b32 v8, 4, v0\nv_add_u32 v9, %d, v8\ns_mov_b32 s18, 0x4000000'%(65536,KC))
        for k in range(52):
            X('ds_read_b128 v[48:51], v9 offset:%d\ns_waitcnt lgkmcnt(0)\nbuffer_store_dwordx4 v[48:51], v8, s[16:19], s4 offen\ns_waitcnt vmcnt(0)\ns_add_u32 s4, s4, 1024'%(k*1024))
        X('s_mov_b32 s18, %d\nL_nodump:'%WS_SIZE)
    def Freg(b,c): return 8*b+4*c
    def Ureg(b,G): return 32+8*b+4*G
    def Frd(b,off):
        return [lambda c=c,hh=hh: p('ds_read_b64 a[%d:%d], v13 offset:%d'%(Freg(b,c)+2*hh,Freg(b,c)+2*hh+1,off+32*(1-c)+8*hh)) for c in range(2) for hh in range(2)]
    def Urd(b,G,off): return lambda: p('ds_read_b128 a[%d:%d], v14 offset:%d'%(Ureg(b,G),Ureg(b,G)+3,off))
    def cmf(G,c,fb,ub):
        a=CA+16*G+4*c
        p('v_mfma_f32_16x16x32_bf16 v[%d:%d], a[%d:%d], a[%d:%d], v[%d:%d]'%(a,a+3,Freg(fb,c&1),Freg(fb,c&1)+3,Ureg(ub,G),Ureg(ub,G)+3,a,a+3))
    uo=[0,64,160,224,320,384]
    def conv_loop(label, groups, ubase):
        p('%s:'%label)
        for k in range(4):
            p('s_waitcnt lgkmcnt(%d)'%(4+len(groups)))
            ms=[]
            for G in groups:
                for c in (2,3): ms.append((G,c,k&3,k))
                for c in (0,1): ms.append((G,c,(k+1)&3,k))
            rd=[Urd((k+2)&3,G,uo[k+2]+2560*(G-ubase)) for G in groups]+Frd((k+3)&3,64*(k+3))
            for i,m_ in enumerate(ms):
                cmf(*m_)
                for _ in range(2):
                    if rd: rd.pop(0)()
        p('v_add_u32 v13, 256, v13\nv_add_u32 v14, 320, v14\ns_sub_u32 s94, s94, 1\ns_cmp_lg_u32 s94, 0\ns_cbranch_scc1 %s'%label)
    for f_ in Frd(0,0)+Frd(1,64): f_()
    X('s_cmp_eq_u32 s86, 1\ns_cbranch_scc1 L_convB')
    Urd(0,1,0)(); Urd(1,1,64)()
    for f_ in Frd(2,128): f_()
    X('s_mov_b32 s94, 8')
    conv_loop('L_cv1',[1],1)
    X('v_add_u32 v14, -2560, v14\ns_mov_b32 s94, 2')
    Urd(0,0,0)(); Urd(1,0,64)()
    X('s_waitcnt lgkmcnt(0)\ns_branch L_cv2')
    X('L_convB:')
    Urd(0,0,0)(); Urd(0,1,2560)(); Urd(1,0,64)(); Urd(1,1,2560+64)()
    for f_ in Frd(2,128): f_()
    X('s_mov_b32 s94, 6')
    conv_loop('L_cv2',[0,1],0)
    X('s_waitcnt lgkmcnt(0)')
    X.stamp()
    X('s_cmp_eq_u32 s86, 0\ns_cbranch_scc1 L_noswap')
    for k in range(16): X('v_swap_b32 v%d, v%d'%(CA+k,CA+16+k))
    X('L_noswap:')
    X('s_mul_i32 s4, s84, %d\ns_add_u32 s4, s4, %d\nv_lshlrev_b32 v8, 4, v0\nv_add_u32 v8, s4, v8\ns_mul_i32 s5, s86, 3072\nv_add_u32 v9, s5, v8\ns_sub_u32 s5, 3072, s5\nv_add_u32 v8, s5, v8'%(KCH,KC))
    for t in range(4): X.ds('ds_write_b128 v9, v[%d:%d] offset:%d'%(CA+16+4*t,CA+19+4*t,t*KCOPY),'cx')
    X('v_mul_u32_u24 v10, 10, v3\nv_lshrrev_b32 v11, 1, v4\nv_add_lshl_u32 v10, v10, v11, 4\nv_and_b32 v11, 1, v4\nv_lshl_add_u32 v10, v11, 3, v10')
    X('s_mul_i32 s4, s86, 2560\ns_add_u32 s4, s4, s95\ns_add_u32 s4, s4, 2400\nv_add_u32 v10, s4, v10')
    for c in range(4): X.ds('ds_read_b64 v[%d:%d], v10 offset:%d'%(48+2*c,49+2*c,32*c),'xn')
    X.wait(lg='all'); X.bar()
    X.stamp()
    for t in range(4): X.ds('ds_read_b128 v[%d:%d], v8 offset:%d'%(CA+16+4*t,CA+19+4*t,t*KCOPY),'cr')
    X('s_mov_b32 s89, s88')
    for k in range(8):
        X('v_lshlrev_b32 v56, 16, v%d\nv_and_b32 v57, 0xffff0000, v%d'%(48+k,48+k))
        X('v_pk_fma_f32 v[%d:%d], v[56:57], s[88:89], v[%d:%d]'%(CA+2*k,CA+2*k+1,CA+2*k,CA+2*k+1))
    X.wait(lg='cr')
    for k in range(8):
        X('v_pk_add_f32 v[%d:%d], v[%d:%d], v[%d:%d]'%(CA+2*k,CA+2*k+1,CA+2*k,CA+2*k+1,CA+16+2*k,CA+17+2*k))
    for k in range(8): X('v_cvt_pk_bf16_f32 v%d, v%d, v%d'%(48+k,CA+2*k,CA+2*k+1))
    for pr in range(2):
        X('v_permlane16_swap_b32 v%d, v%d\nv_permlane16_swap_b32 v%d, v%d'%(48+4*pr,50+4*pr,49+4*pr,51+4*pr))
    X('v_lshlrev_b32 v8, 7, v3\nv_and_b32 v9, 1, v4\nv_lshl_add_u32 v8, v9, 5, v8\nv_lshrrev_b32 v9, 1, v4\nv_lshl_add_u32 v8, v9, 4, v8')
    X('s_lshl_b32 s4, s85, 12\ns_lshl_b32 s5, s86, 11\ns_add_u32 s4, s4, s5\ns_add_u32 s4, s4, %d'%YT)
    X.vmem('buffer_store_dwordx4 v[48:51], v8, s[16:19], s4 offen sc1','yst')
    X.vmem('buffer_store_dwordx4 v[52:55], v8, s[16:19], s4 offen offset:64 sc1','yst')
    X.stamp()
    w2_addrs(X,13,14)
    X('v_add_u32 v13, s80, v13\nv_add_u32 v14, s80, v14')
    W2X=lambda step,t:'a[%d:%d]'%(16*step+4*t,16*step+4*t+3)
    X.wait(vm='w2x')
    for k in range(4): w2reads(X,k,k,W2X,13,14)
    g2_bases(X,10)
    ex_addrs(X,5,6,7,10,11,12,1)
    X('s_lshl_b32 s4, s39, 7\ns_add_u32 s6, s4, %d\nv_and_b32 v8, 31, v0\nv_lshlrev_b32 v8, 2, v8\nv_lshlrev_b32 v9, 4, v0'%FB)
    poll(X,'buffer_load_dword v126, v8, s[16:19], s6 offen sc1',['v126'],None)
    X('s_lshl_b32 s4, s86, 9\ns_add_u32 s4, s4, s85\ns_lshl_b32 s4, s4, 2\ns_add_u32 s4, s4, %d\nv_mov_b32 v8, 0\nv_mov_b32 v15, s41\ns_mov_b64 exec, 1'%FC)
    X.vmem('buffer_store_dword v15, v8, s[16:19], s4 offen sc1','fl')
    X('s_mov_b64 exec, -1')
    X.stamp()
    HregX=lambda k:'a[%d:%d]'%(64+4*k,67+4*k)
    for n in range(16):
        X('s_add_u32 s4, s%d, %d'%(74+n//4,(n%4)*1024))
        X.vmem('buffer_load_dwordx4 %s, v9, s[16:19], s4 offen sc1'%HregX(n),('h',n))
    X.wait(lg='all')
    g2(X,4,None,W2X,HregX,16,accA,accB,recv,9,5,6,False,16)
    X.stamp()
    X.vmem('buffer_load_dwordx4 v[48:51], v12, s[8:11], 0 offen','xo')
    late_loads(X,False,48,12,8)
    final_epilogue(X,False,accB,48,7,10,11)
    X('buffer_store_dwordx4 v[48:51], v12, s[24:27], 0 offen')
    tail(X)
    p('L_end:\ns_endpgm')
    assert M.nbar==X.nbar,(M.nbar,X.nbar)
    n=p.fix_hazards()
    for wg in (0,5,77):
        for w in range(8):
            r=trace_check(p,wg,w); assert not r['errs'], (wg,w,r['errs'][:8])
            assert r['barriers']==M.nbar,(w,r['barriers'])
            if wg==5: print('wave',w,r['barriers'],r['counts'])
    open(path,'w').write(wrap(p,512,LDS_BYTES,256,128))
    print(check_local(path),'nops',n,'stamps',M.nst,X.nst)
if __name__=='__main__':
    gen('k1.s')
    gen('k1p.s',prof=True)
    gen('k1d.s',dump='K')
```
